```python
import torch

def _softmax(x, axis=-1):
    return torch.softmax(x, dim=axis)
def _gelu(x):
    return torch.nn.functional.gelu(x, approximate="tanh")
def _silu(x):
    return torch.nn.functional.silu(x)
def _sigmoid(x):
    return torch.sigmoid(x)
def _layernorm(x, axis=-1, eps=1e-5):
    m = x.mean(dim=axis, keepdim=True)
    v = x.var(dim=axis, keepdim=True, unbiased=False)
    return (x - m) / torch.sqrt(v + eps)
def _scatter_add(tgt, idx, src, axis=0):
    return tgt.clone().index_add_(axis, idx, src)
def _segment_sum(src, seg, n):
    out = torch.zeros((n,) + src.shape[1:], dtype=src.dtype)
    return out.index_add_(0, seg, src)
def _pad(x, pw):
    flat = tuple(v for pair in reversed(pw) for v in pair)
    return torch.nn.functional.pad(x, flat)

kernel_name = 'standalone__batchnorm__prompt'

def setup_inputs():

    _w = (lambda a: (lambda t: t.to(torch.bfloat16) if t.is_floating_point() else t)(torch.as_tensor(a)))
    B, S, C = 2, 2048, 1024
    K = 3
    return {
        "x": _w((lambda *s: torch.randn(*s, dtype=torch.bfloat16) * 0.05)(B, S, C)),
        "w": _w((lambda *s: torch.randn(*s, dtype=torch.bfloat16) * 0.05)(K, C, C) * (1.0 / (K * C) ** 0.5)),
        "mean": _w((lambda *s: torch.randn(*s, dtype=torch.bfloat16) * 0.05)(C) * 0.1),
        "var": _w(torch.abs((lambda *s: torch.randn(*s, dtype=torch.bfloat16) * 0.05)(C)) + 0.5),
        "g": _w((lambda *s: torch.randn(*s, dtype=torch.bfloat16) * 0.05)(C) + 1.0),
        "b": _w((lambda *s: torch.randn(*s, dtype=torch.bfloat16) * 0.05)(C) * 0.1),
    }

def reference(x, w, mean, var, g, b):
    K = 3
    P = K // 2
    S = x.shape[1]
    xp = _pad(x, ((0, 0), (P, P), (0, 0)))
    y = sum(torch.einsum('bsc,cd->bsd', xp[:, k:k + S, :], w[k]) for k in range(K))
    inv_std = 1.0 / torch.sqrt(var + 1e-5)
    y = (y - mean) * (g * inv_std) + b
    return _silu(y)
```

```python
import sys, argparse

HEADER = open("standalone__batchnorm__prompt.s.ref").read().split("; Override launch")[0]
KN = "standalone__batchnorm__prompt_kernel"

ASLOT = 32768
HALO = 3 * ASLOT
BBASE = HALO + 4096
BSLOT = 12288
LDS_TOTAL = BBASE + 5 * BSLOT
assert LDS_TOTAL == 163840
XBYTES = 4096 * 2048
WBYTES = 3 * 1024 * 2048

sX, sW, sO, sP = 8, 12, 16, 20
sWave, sM0, sN0 = 24, 25, 26
sC = 27
sAr, sAo = 28, 29
sB0, sB1, sB2 = 30, 31, 32
sHc = 33
sComb = 34
sSA, sSB = 35, 36
sWA, sWB = 37, 38
sT0, sT1, sT2, sT3 = 39, 40, 41, 42
sK = 44
sWS = 60
sTS = 64

vL, vT0, vT1, vT2, vT3, vT4, vT5 = 1, 2, 3, 4, 5, 6, 7
vA = [8, 9, 10, 11]
vB = [12, 13, 14]
vH = 15
vA0b, vAmb, vApb, vAmm, vApm = 16, 17, 18, 19, 20
vA0, vAm, vAp = 21, 22, 23
vBb = [24, 25]
vBc = [26, 27]
vOut = 28
vSc, vSh = 32, 40
vRaw = 48
ACC = 64
FR = 128


def acc(j, n):
    b = ACC + (j * 2 + n) * 4
    return f"v[{b}:{b+3}]"


def xf(st, f):
    b = FR + st * 64 + (f + 1) * 4
    return b


def wf(st, t, n):
    b = FR + st * 64 + 40 + (t * 2 + n) * 4
    return b


def r4(b):
    return f"v[{b}:{b+3}]"


class Gen:
    def __init__(self, o):
        self.o = o
        self.L = []
        self.nst = 0

    def A(self, s):
        self.L.append(s)

    def stamp(self):
        if self.o.stamps:
            i = self.nst
            self.nst += 1
            self.A(f"s_memrealtime s[{sTS+4*i}:{sTS+4*i+1}]")
            self.A(f"s_memtime s[{sTS+4*i+2}:{sTS+4*i+3}]")

    def dmaA(self, e):
        v = vA[(e >> 2) * 2 + (e & 1)]
        return f"buffer_load_dwordx4 v{v}, s[{sX}:{sX+3}], s{sSA} offen offset:{(e & 3) * 1024} lds{self.o.xflag}"

    def dmaB(self, t):
        return f"buffer_load_dwordx4 v{vB[t]}, s[{sW}:{sW+3}], s{sSB} offen offset:{t * 1024} lds{self.o.wflag}"

    def reads(self, st):
        def rx(f):
            b = xf(st, f)
            if f == -1:
                return f"ds_read_b128 {r4(b)}, v{vAm}"
            if f == 8:
                return f"ds_read_b128 {r4(b)}, v{vAp}"
            return f"ds_read_b128 {r4(b)}, v{vA0} offset:{f*2048}"
        def rw(t, n):
            b = wf(st, t, n)
            return [f"ds_read_b64_tr_b16 v[{b+2*u}:{b+2*u+1}], v{vBc[n]} offset:{t*1024+u*512}" for u in range(2)]
        R = []
        R += rw(0, 0) + [rx(-1)] + rw(1, 0) + [rx(0)] + rw(2, 0) + [rx(1)]
        R += rw(2, 1) + rw(1, 1) + rw(0, 1)
        R += [rx(f) for f in range(2, 9)]
        return R

    def mfmas(self, st):
        M = []
        for j in range(8):
            for n in range(2):
                for tt in range(3):
                    t = tt if n == 0 else 2 - tt
                    M.append(f"v_mfma_f32_16x16x32_bf16 {acc(j,n)}, {r4(wf(st,t,n))}, {r4(xf(st,j+t-1))}, {acc(j,n)}")
        return M

    def ringB(self):
        return [f"s_mov_b32 s{sB2}, s{sB1}", f"s_mov_b32 s{sB1}, s{sB0}",
                f"s_add_u32 s{sB0}, s{sB0}, {BSLOT}", f"s_cmp_eq_u32 s{sB0}, {BBASE+5*BSLOT}",
                f"s_cselect_b32 s{sB0}, {BBASE}, s{sB0}"]

    def ringA(self):
        return [f"s_mov_b32 s{sAo}, s{sAr}", f"s_add_u32 s{sAr}, s{sAr}, {ASLOT}",
                f"s_cmp_eq_u32 s{sAr}, {3*ASLOT}", f"s_cselect_b32 s{sAr}, 0, s{sAr}"]

    def setB(self):
        return [f"v_add_u32 v{vBc[n]}, s{sB0}, v{vBb[n]}" for n in range(2)]

    def setA(self):
        return [f"v_or_b32 v{vA0}, s{sAr}, v{vA0b}",
                f"v_and_or_b32 v{vAm}, s{sComb}, v{vAmm}, v{vAmb}",
                f"v_and_or_b32 v{vAp}, s{sComb}, v{vApm}, v{vApb}"]

    def flipA(self):
        return [f"v_xor_b32 v{r}, 64, v{r}" for r in (vA0, vAm, vAp)]

    def interleave(self, M, slots):
        for i, m in enumerate(M):
            self.A(m)
            for s in slots.get(i, []):
                self.A(s)

    def dma_setup(self):
        A = self.A
        A(f"v_lshrrev_b32 v{vT0}, 3, v{vL}")
        A(f"v_and_b32 v{vT1}, 6, v{vT0}")
        A(f"v_and_b32 v{vT2}, 7, v{vL}")
        A(f"v_xor_b32 v{vT1}, v{vT1}, v{vT2}")
        A(f"v_lshlrev_b32 v{vT1}, 4, v{vT1}")
        A(f"v_lshl_add_u32 v{vT1}, v{vT0}, 14, v{vT1}")
        A(f"s_lshr_b32 s{sT0}, s{sWave}, 1")
        A(f"s_lshl_b32 s{sT0}, s{sT0}, 7")
        A(f"s_and_b32 s{sT1}, s{sWave}, 1")
        A(f"s_lshl_b32 s{sT2}, s{sT1}, 2")
        A(f"s_add_u32 s{sT0}, s{sT0}, s{sT2}")
        A(f"s_add_u32 s{sT0}, s{sT0}, s{sM0}")
        A(f"s_lshl_b32 s{sT0}, s{sT0}, 11")
        A(f"v_add_u32 v{vA[0]}, s{sT0}, v{vT1}")
        A(f"v_add_u32 v{vA[1]}, {131072-1024}, v{vA[0]}")
        A(f"v_add_u32 v{vA[2]}, 4096, v{vA[0]}")
        A(f"v_add_u32 v{vA[3]}, 4096, v{vA[1]}")
        A(f"v_bfe_u32 v{vT1}, v{vL}, 4, 1")
        A(f"s_lshl_b32 s{sT1}, s{sT1}, 1")
        A(f"v_or_b32 v{vT1}, s{sT1}, v{vT1}")
        A(f"v_lshlrev_b32 v{vT1}, 1, v{vT1}")
        A(f"v_xor_b32 v{vT1}, v{vT1}, v{vT2}")
        A(f"v_lshlrev_b32 v{vT1}, 4, v{vT1}")
        A(f"v_lshl_add_u32 v{vT1}, v{vT0}, 11, v{vT1}")
        A(f"s_lshl_b32 s{sT0}, s{sWave}, 14")
        A(f"s_lshl_b32 s{sT2}, s{sN0}, 1")
        A(f"s_add_u32 s{sT0}, s{sT0}, s{sT2}")
        A(f"v_add_u32 v{vB[0]}, s{sT0}, v{vT1}")
        A(f"v_add_u32 v{vB[1]}, {2097152-1024}, v{vB[0]}")
        A(f"v_add_u32 v{vB[2]}, {2097152-1024}, v{vB[1]}")
        A(f"s_add_u32 s{sT0}, s{sM0}, 256")
        A(f"s_and_b32 s{sT1}, s{sT0}, 2047")
        A(f"s_lshl_b32 s{sT0}, s{sT0}, 11")
        A(f"s_cmp_eq_u32 s{sT1}, 0")
        A(f"s_cselect_b32 s{sT0}, 0x40000000, s{sT0}")
        A(f"s_sub_u32 s{sT2}, s{sM0}, 1")
        A(f"s_lshl_b32 s{sT2}, s{sT2}, 11")
        A(f"s_and_b32 s{sT1}, s{sM0}, 2047")
        A(f"s_cmp_eq_u32 s{sT1}, 0")
        A(f"s_cselect_b32 s{sT2}, 0x40000000, s{sT2}")
        A(f"v_and_b32 v{vT1}, 1, v{vT0}")
        A(f"v_cmp_eq_u32 vcc, 1, v{vT1}")
        A(f"v_mov_b32 v{vT3}, s{sT0}")
        A(f"v_mov_b32 v{vT4}, s{sT2}")
        A(f"v_mul_u32_u24 v{vT1}, 6, v{vT1}")
        A(f"v_cndmask_b32 v{vT3}, v{vT3}, v{vT4}, vcc")
        A(f"v_xor_b32 v{vT1}, v{vT1}, v{vT2}")
        A(f"v_lshl_add_u32 v{vT3}, v{vT1}, 4, v{vT3}")
        A(f"v_lshrrev_b32 v{vT1}, 4, v{vL}")
        A(f"v_lshl_add_u32 v{vT3}, v{vT1}, 7, v{vT3}")
        A(f"s_lshl_b32 s{sT0}, s{sWave}, 9")
        A(f"v_add_u32 v{vH}, s{sT0}, v{vT3}")
        A(f"s_lshl_b32 s{sWA}, s{sWave}, 13")
        A(f"s_mul_i32 s{sWB}, s{sWave}, 3072")

    def read_setup(self):
        A = self.A
        A(f"v_lshrrev_b32 v{vT0}, 4, v{vL}")
        A(f"v_and_b32 v{vT1}, 15, v{vL}")
        A(f"s_lshr_b32 s{sT0}, s{sWave}, 1")
        A(f"s_lshl_b32 s{sT0}, s{sT0}, 4")
        for (dst, msk, d, plane, hoff) in ((vA0b, None, 0, 0, 0), (vAmb, vAmm, -1, 7, 128), (vApb, vApm, 1, 0, 0)):
            A(f"s_add_u32 s{sT1}, s{sT0}, {d}")
            A(f"v_add_u32 v{vT2}, s{sT1}, v{vT1}")
            A(f"v_and_b32 v{vT3}, 6, v{vT2}")
            A(f"v_xor_b32 v{vT3}, v{vT3}, v{vT0}")
            A(f"v_lshlrev_b32 v{vT3}, 4, v{vT3}")
            A(f"v_and_b32 v{vT4}, 15, v{vT2}")
            A(f"v_lshlrev_b32 v{vT4}, 7, v{vT4}")
            A(f"v_bfe_u32 v{vT5}, v{vT2}, 4, 1")
            A(f"v_lshl_add_u32 v{vT4}, v{vT5}, 14, v{vT4}")
            if plane:
                A(f"v_add_u32 v{vT4}, {plane*2048}, v{vT4}")
            if msk is not None:
                A(f"v_cmp_gt_u32 vcc, 32, v{vT2}")
                A(f"v_mov_b32 v{vT5}, {HALO+hoff}")
                A(f"v_mov_b32 v{msk}, 0xf00")
                A(f"v_mov_b32 v{vT2}, 0x18000")
                A(f"v_cndmask_b32 v{vT4}, v{vT5}, v{vT4}, vcc")
                A(f"v_cndmask_b32 v{msk}, v{msk}, v{vT2}, vcc")
            A(f"v_or_b32 v{dst}, v{vT4}, v{vT3}")
        A(f"v_and_b32 v{vT2}, 1, v{vT0}")
        A(f"v_lshlrev_b32 v{vT2}, 1, v{vT2}")
        A(f"v_bfe_u32 v{vT3}, v{vT1}, 3, 1")
        A(f"v_or_b32 v{vT2}, v{vT2}, v{vT3}")
        A(f"s_and_b32 s{sT1}, s{sWave}, 1")
        A(f"s_lshl_b32 s{sT2}, s{sT1}, 1")
        A(f"v_xor_b32 v{vT2}, s{sT2}, v{vT2}")
        A(f"v_lshlrev_b32 v{vT2}, 5, v{vT2}")
        A(f"v_and_b32 v{vT3}, 3, v{vT1}")
        A(f"v_lshl_add_u32 v{vT2}, v{vT3}, 3, v{vT2}")
        A(f"v_lshrrev_b32 v{vT3}, 2, v{vT1}")
        A(f"v_lshl_add_u32 v{vT2}, v{vT3}, 7, v{vT2}")
        A(f"v_mul_u32_u24 v{vT3}, 3072, v{vT0}")
        A(f"v_add_u32 v{vBb[0]}, v{vT2}, v{vT3}")
        A(f"v_xor_b32 v{vBb[1]}, 32, v{vBb[0]}")
        A(f"s_lshl_b32 s{sT0}, s{sT0}, 3")
        A(f"s_add_u32 s{sT0}, s{sT0}, s{sM0}")
        A(f"s_lshl_b32 s{sT0}, s{sT0}, 11")
        A(f"s_lshl_b32 s{sT1}, s{sT1}, 5")
        A(f"s_add_u32 s{sT1}, s{sT1}, s{sN0}")
        A(f"s_lshl_b32 s{sT1}, s{sT1}, 1")
        A(f"s_add_u32 s{sT0}, s{sT0}, s{sT1}")
        A(f"v_and_b32 v{vT2}, 1, v{vT0}")
        A(f"v_lshlrev_b32 v{vT2}, 5, v{vT2}")
        A(f"v_lshrrev_b32 v{vT3}, 1, v{vT0}")
        A(f"v_lshl_add_u32 v{vT2}, v{vT3}, 4, v{vT2}")
        A(f"v_lshl_add_u32 v{vT2}, v{vT1}, 14, v{vT2}")
        A(f"v_add_u32 v{vOut}, s{sT0}, v{vT2}")
        A(f"v_lshlrev_b32 v{vT5}, 3, v{vT0}")
        A(f"v_add_u32 v{vT5}, s{sT1}, v{vT5}")

    def param_loads(self):
        A = self.A
        for p in range(4):
            A(f"s_mov_b32 s{sP}, s{sK+4+2*p}")
            A(f"s_mov_b32 s{sP+1}, s{sK+5+2*p}")
            for n in range(2):
                b = vRaw + p * 4 + n * 2
                A(f"buffer_load_dwordx2 v[{b}:{b+1}], v{vT5}, s[{sP}:{sP+3}], 0 offen offset:{n*32}")

    def param_math(self):
        A = self.A
        def unpack(dst, p, i):
            src = vRaw + p * 4 + (i >> 1)
            if i & 1:
                A(f"v_and_b32 v{dst}, 0xffff0000, v{src}")
            else:
                A(f"v_lshlrev_b32 v{dst}, 16, v{src}")
        def rnd():
            for i in range(8):
                A(f"v_cvt_pk_bf16_f32 v{vSc+i}, v{vSc+i}, v{vSc+i}")
            for i in range(8):
                A(f"v_lshlrev_b32 v{vSc+i}, 16, v{vSc+i}")
        for i in range(8):
            unpack(vSc + i, 1, i)
        for i in range(8):
            A(f"v_add_f32 v{vSc+i}, 0x3727c5ac, v{vSc+i}")
        rnd()
        for i in range(8):
            A(f"v_sqrt_f32 v{vSc+i}, v{vSc+i}")
        A("s_nop 0")
        rnd()
        for i in range(8):
            A(f"v_rcp_f32 v{vSc+i}, v{vSc+i}")
        A("s_nop 0")
        rnd()
        for i in range(8):
            unpack(vSh + i, 2, i)
        for i in range(8):
            A(f"v_mul_f32 v{vSc+i}, v{vSh+i}, v{vSc+i}")
        rnd()
        for i in range(8):
            unpack(vSh + i, 3, i)
            unpack(vT0, 0, i)
            A(f"v_fma_f32 v{vSh+i}, -v{vT0}, v{vSc+i}, v{vSh+i}")

    def epilogue(self):
        A = self.A
        A("s_nop 7")
        A(f"s_mov_b32 s{sT0}, 0xbfb8aa3b")
        A(f"s_mov_b32 s{sT1}, 0")
        T = FR
        for j in range(8):
            tb = T + (j & 1) * 16
            ab = ACC + j * 8
            for i in range(8):
                A(f"v_fma_f32 v{ab+i}, v{ab+i}, v{vSc+i}, v{vSh+i}")
            for i in range(8):
                A(f"v_mul_f32 v{tb+i}, s{sT0}, v{ab+i}")
            for i in range(8):
                A(f"v_exp_f32 v{tb+i}, v{tb+i}")
            for i in range(8):
                A(f"v_add_f32 v{tb+i}, 1.0, v{tb+i}")
            for i in range(8):
                A(f"v_rcp_f32 v{tb+i}, v{tb+i}")
            for i in range(8):
                A(f"v_mul_f32 v{ab+i}, v{ab+i}, v{tb+i}")
            ob = T + 32 + j * 4
            for i in range(4):
                A(f"v_cvt_pk_bf16_f32 v{ob+i}, v{ab+2*i}, v{ab+2*i+1}")
            A("s_nop 1")
            A(f"v_permlane16_swap_b32 v{ob}, v{ob+2}")
            A(f"v_permlane16_swap_b32 v{ob+1}, v{ob+3}")
            A(f"buffer_store_dwordx4 v[{ob}:{ob+3}], v{vOut}, s[{sO}:{sO+3}], s{sT1} offen offset:{(j&1)*2048}{self.o.oflag}")
            if j & 1:
                A(f"s_add_u32 s{sT1}, s{sT1}, 4096")

    def write_stamps(self):
        if not self.o.stamps:
            return
        A = self.A
        A("s_waitcnt vmcnt(0)")
        self.stamp()
        A("s_waitcnt lgkmcnt(0)")
        A(f"v_lshrrev_b32 v{vT0}, 6, v0")
        A(f"s_lshl_b32 s{sT0}, s2, 3")
        A(f"v_add_u32 v{vT0}, s{sT0}, v{vT0}")
        A(f"v_lshlrev_b32 v{vT0}, 6, v{vT0}")
        for i in range(8):
            A(f"v_mov_b32 v{vT1}, s{sTS+4*i}")
            A(f"v_mov_b32 v{vT2}, s{sTS+4*i+2}")
            A(f"buffer_store_dword v{vT1}, v{vT0}, s[{sWS}:{sWS+3}], 0 offen offset:{i*8}")
            A(f"buffer_store_dword v{vT2}, v{vT0}, s[{sWS}:{sWS+3}], 0 offen offset:{i*8+4}")

    def issueA(self, slot_s, win):
        return [f"s_add_u32 m0, s{slot_s}, s{sWA}" if win == 0 else f"s_add_u32 m0, m0, 4096"]

    def advSA(self):
        return [f"s_add_u32 s{sSA}, s{sSA}, 128", f"s_and_b32 s{sSA}, s{sSA}, 2047"]

    def advSB(self):
        return [f"s_add_u32 s{sSB}, s{sSB}, 65536", f"s_and_b32 s{sSB}, s{sSB}, 0x1fffff"]

    def prologue_dma(self, upto):
        A = self.A
        def a(slot, wins=(0, 1), adv=True):
            for win in wins:
                A(f"s_add_u32 m0, s{sWA}, {slot*ASLOT+win*4096}")
                A("s_nop 0")
                for e in range(4):
                    A(self.dmaA(win * 4 + e))
            if adv:
                for s in self.advSA(): A(s)
        def b(slot):
            A(f"s_add_u32 m0, s{sWB}, {BBASE+slot*BSLOT}")
            A("s_nop 0")
            for t in range(3):
                A(self.dmaB(t))
            for s in self.advSB(): A(s)
        b(0)
        a(0)
        A(f"s_lshl_b32 s{sT0}, s{sWave}, 10")
        A(f"s_add_u32 m0, s{sT0}, {HALO}")
        A("s_nop 0")
        A(f"buffer_load_dwordx4 v{vH}, s[{sX}:{sX+3}], 0 offen lds")
        b(1)
        b(2)
        a(1)
        b(3)
        if upto == "part":
            a(2, wins=(0,), adv=False)
            return 18
        a(2)
        b(4)
        return 25

    def build(self):
        o = self.o
        A = self.A
        d2 = o.mode == "d2"
        nthreads = 512 if d2 else 256
        A(HEADER.rstrip())
        A(f"; @launch grid=(256,1,1) block=({nthreads},1,1) lds={LDS_TOTAL}")
        A('.amdgcn_target "amdgcn-amd-amdhsa--gfx950"')
        A(f".text\n.globl {KN}\n.p2align 8\n.type {KN},@function\n{KN}:")
        A("s_cmp_ge_u32 s2, 256")
        A("s_cbranch_scc1 L_end")
        self.stamp()
        A(f"s_load_dwordx16 s[{sK}:{sK+15}], s[0:1], 0")
        if o.stamps:
            A(f"s_load_dwordx2 s[{sWS}:{sWS+1}], s[0:1], 64")
            A(f"s_mov_b32 s{sWS+2}, 0x100000")
            A(f"s_mov_b32 s{sWS+3}, 0x20000")
        A(f"v_lshrrev_b32 v{vT0}, 6, v0")
        A(f"v_and_b32 v{vL}, 63, v0")
        A(f"v_readfirstlane_b32 s{sT3}, v{vT0}")
        A(f"s_and_b32 s{sT0}, s2, 7")
        A(f"s_lshr_b32 s{sT1}, s2, 3")
        A(f"s_lshr_b32 s{sM0}, s{sT0}, 1")
        A(f"s_lshl_b32 s{sM0}, s{sM0}, 2")
        A(f"s_lshr_b32 s{sT2}, s{sT1}, 3")
        A(f"s_add_u32 s{sM0}, s{sM0}, s{sT2}")
        A(f"s_lshl_b32 s{sM0}, s{sM0}, 8")
        A(f"s_and_b32 s{sN0}, s{sT0}, 1")
        A(f"s_lshl_b32 s{sN0}, s{sN0}, 3")
        A(f"s_and_b32 s{sT2}, s{sT1}, 7")
        A(f"s_add_u32 s{sN0}, s{sN0}, s{sT2}")
        A(f"s_lshl_b32 s{sN0}, s{sN0}, 6")
        A(f"s_and_b32 s{sWave}, s{sT3}, 3")
        if o.stagger == "none":
            A(f"s_mov_b32 s{sHc}, 0")
        elif o.stagger == "xcd":
            A(f"s_lshl_b32 s{sHc}, s{sT0}, 1")
        elif o.stagger == "m":
            A(f"s_lshr_b32 s{sHc}, s{sM0}, 8")
        elif o.stagger == "m4":
            A(f"s_lshr_b32 s{sHc}, s{sM0}, 6")
            A(f"s_and_b32 s{sHc}, s{sHc}, 15")
        A(f"s_lshl_b32 s{sSA}, s{sHc}, 7")
        A(f"s_lshl_b32 s{sSB}, s{sHc}, 17")
        A(f"s_lshl_b32 s{sHc}, s{sHc}, 8")
        A(f"s_mov_b32 s{sX+2}, {XBYTES}")
        A(f"s_mov_b32 s{sX+3}, 0x20000")
        A(f"s_mov_b32 s{sW+2}, {WBYTES}")
        A(f"s_mov_b32 s{sW+3}, 0x20000")
        A(f"s_mov_b32 s{sO+2}, {XBYTES}")
        A(f"s_mov_b32 s{sO+3}, 0x20000")
        A(f"s_mov_b32 s{sP+2}, 2048")
        A(f"s_mov_b32 s{sP+3}, 0x20000")
        if d2:
            A(f"s_cmp_ge_u32 s{sT3}, 4")
            A("s_cbranch_scc1 L_loader")
        else:
            self.dma_setup()
        def srds():
            A("s_waitcnt lgkmcnt(0)")
            A(f"s_mov_b32 s{sX}, s{sK}")
            A(f"s_mov_b32 s{sX+1}, s{sK+1}")
            A(f"s_mov_b32 s{sW}, s{sK+2}")
            A(f"s_mov_b32 s{sW+1}, s{sK+3}")
            A(f"s_mov_b32 s{sO}, s{sK+12}")
            A(f"s_mov_b32 s{sO+1}, s{sK+13}")
        if not d2:
            srds()
            self.stamp()
            later = self.prologue_dma("part")
            self.read_setup()
            self.param_loads()
            later += 8
        else:
            self.read_setup()
            srds()
            self.stamp()
            self.param_loads()
        self.stamp()
        for i in range(64):
            A(f"v_mov_b32 v{ACC+i}, 0")
        A(f"s_mov_b32 s{sAr}, 0")
        A(f"s_mov_b32 s{sAo}, {2*ASLOT}")
        A(f"s_mov_b32 s{sB0}, {BBASE}")
        A(f"s_mov_b32 s{sB1}, {BBASE+4*BSLOT}")
        A(f"s_mov_b32 s{sB2}, {BBASE+3*BSLOT}")
        A(f"s_or_b32 s{sComb}, s{sAr}, s{sHc}")
        A(f"s_mov_b32 s{sC}, 0")
        for s in self.setA() + self.setB(): A(s)
        if d2:
            A("s_waitcnt vmcnt(0)")
            self.param_math()
        else:
            A(f"s_waitcnt vmcnt({later})")
        A("s_barrier")
        self.stamp()
        for s in self.reads(0): A(s)
        for s in self.ringB() + self.flipA() + self.setB(): A(s)
        A(".p2align 6")
        A("L_loop:")
        A("s_waitcnt lgkmcnt(0)")
        sl = {}
        def put(i, x):
            sl.setdefault(i, []).extend(x if isinstance(x, list) else [x])
        R = self.reads(1)
        for k, r in enumerate(R):
            put(int(k * o.rspan / len(R)), r)
        if not d2:
            put(1, f"s_add_u32 m0, s{sAo}, s{sWA}")
            put(2, "s_add_u32 m0, m0, 4096")
            for e in range(4):
                put(4 + e * 6, self.dmaA(4 + e))
            put(24, self.advSA()[0]); put(25, self.advSA()[1])
            put(23, f"s_add_u32 m0, s{sB2}, s{sWB}")
            put(26, [f"s_cmp_lt_u32 s{sC}, 14", f"s_cselect_b32 s{sW+2}, {WBYTES}, 0"])
            for t in range(3):
                put(28 + t * 6, self.dmaB(t))
            put(41, self.advSB()[0]); put(42, self.advSB()[1])
        tail = self.ringA() + [f"s_add_u32 s{sHc}, s{sHc}, 256", f"s_and_b32 s{sHc}, s{sHc}, 0xf00",
                               f"s_or_b32 s{sComb}, s{sAr}, s{sHc}"]
        rb = self.ringB()
        put(30, tail[0:2]); put(31, tail[2:4]); put(32, tail[4]); put(33, tail[5]); put(35, tail[6])
        put(37, rb[0:2]); put(38, rb[2]); put(39, rb[3:5])
        va = self.setA() + self.setB()
        for k, s in enumerate(va):
            put(42 + k, s)
        put(47, "s_waitcnt lgkmcnt(0)" if d2 else "s_waitcnt vmcnt(11) lgkmcnt(0)")
        put(47, "s_barrier")
        self.interleave(self.mfmas(0), sl)
        sl = {}
        R = self.reads(0)
        for k, r in enumerate(R):
            put(int(k * o.rspan / len(R)), r)
        if not d2:
            put(1, f"s_add_u32 m0, s{sB2}, s{sWB}")
            for t in range(3):
                put(4 + t * 6, self.dmaB(t))
            put(17, self.advSB()[0]); put(18, self.advSB()[1])
            put(19, f"s_add_u32 m0, s{sAo}, s{sWA}")
            put(20, [f"s_cmp_lt_u32 s{sC}, 13", f"s_cselect_b32 s{sX+2}, {XBYTES}, 0"])
            for e in range(4):
                put(22 + e * 6, self.dmaA(e))
        put(37, rb[0:2]); put(38, rb[2]); put(39, rb[3:5])
        va = self.flipA() + self.setB()
        for k, s in enumerate(va):
            put(41 + k, s)
        put(46, f"s_add_u32 s{sC}, s{sC}, 1")
        put(46, f"s_cmp_lt_u32 s{sC}, 16")
        put(47, "s_cbranch_scc1 L_loop")
        self.interleave(self.mfmas(1), sl)
        self.stamp()
        A("s_waitcnt lgkmcnt(0)")
        if not d2:
            self.param_math()
        self.epilogue()
        self.stamp()
        self.write_stamps()
        A("L_end:")
        A("s_endpgm")
        if d2:
            A("L_loader:")
            self.dma_setup()
            srds()
            later = self.prologue_dma("all")
            A(f"s_mov_b32 s{sAr}, 0")
            A(f"s_mov_b32 s{sB0}, {BBASE}")
            A(f"s_mov_b32 s{sC}, 0")
            A(f"s_waitcnt vmcnt({later})")
            A("s_barrier")
            A("L_lloop:")
            A("s_waitcnt vmcnt(11)")
            A("s_barrier")
            def nextB():
                for s in self.advSB() + self.ringB()[2:]: A(s)
            A(f"s_add_u32 m0, s{sB0}, s{sWB}")
            A("s_nop 0")
            for t in range(3): A(self.dmaB(t))
            nextB()
            A(f"s_cmp_eq_u32 s{sC}, 13")
            A("s_cbranch_scc1 L_ltail")
            for win in range(2):
                A(self.issueA(sAr, win)[0])
                A("s_nop 0")
                for e in range(4): A(self.dmaA(win * 4 + e))
            for s in self.advSA() + self.ringA()[1:]: A(s)
            A(f"s_add_u32 m0, s{sB0}, s{sWB}")
            A("s_nop 0")
            for t in range(3): A(self.dmaB(t))
            nextB()
            A(f"s_add_u32 s{sC}, s{sC}, 1")
            A("s_branch L_lloop")
            A("L_ltail:")
            A("s_waitcnt vmcnt(0)")
            A("s_barrier")
            A("s_endpgm")
        A(f""".section .rodata,"a"
.p2align 6
.amdhsa_kernel {KN}
  .amdhsa_next_free_vgpr 256
  .amdhsa_next_free_sgpr 102
  .amdhsa_accum_offset 256
  .amdhsa_group_segment_fixed_size 0
  .amdhsa_kernarg_size 72
  .amdhsa_user_sgpr_count 2
  .amdhsa_user_sgpr_kernarg_segment_ptr 1
  .amdhsa_system_sgpr_workgroup_id_x 1
.end_amdhsa_kernel""")
        return "\n".join(self.L) + "\n"


def main():
    p = argparse.ArgumentParser()
    p.add_argument("out")
    p.add_argument("--mode", default="d1")
    p.add_argument("--stamps", type=int, default=0)
    p.add_argument("--stagger", default="none")
    p.add_argument("--rspan", type=int, default=36)
    p.add_argument("--xflag", default="")
    p.add_argument("--wflag", default="")
    p.add_argument("--oflag", default="")
    o = p.parse_args()
    for k in ("xflag", "wflag", "oflag"):
        v = getattr(o, k)
        setattr(o, k, " " + v.replace("+", " ") if v else "")
    open(o.out, "w").write(Gen(o).build())


if __name__ == "__main__":
    main()
```

```python
import sys, argparse

HEADER = open("standalone__batchnorm__prompt.s.ref").read().split("; Override launch")[0]
KN = "standalone__batchnorm__prompt_kernel"

ASLOT = 32768
HALO = 3 * ASLOT
BBASE = HALO + 4096
BSLOT = 12288
LDS_TOTAL = BBASE + 5 * BSLOT
assert LDS_TOTAL == 163840
XBYTES = 4096 * 2048
WBYTES = 3 * 1024 * 2048

sX, sW, sO, sP = 8, 12, 16, 20
sWave, sM0, sN0 = 24, 25, 26
sC = 27
sAr, sAo = 28, 29
sB0, sB1, sB2 = 30, 31, 32
sHc = 33
sComb = 34
sSA, sSB = 35, 36
sWA, sWB = 37, 38
sT0, sT1, sT2, sT3 = 39, 40, 41, 42
sK = 44
sWS = 60
sTS = 64

vL, vT0, vT1, vT2, vT3, vT4, vT5 = 1, 2, 3, 4, 5, 6, 7
vA = [8, 9, 10, 11]
vB = [12, 13, 14]
vH = 15
vA0b, vAmb, vApb, vAmm, vApm = 16, 17, 18, 19, 20
vA0, vAm, vAp = 21, 22, 23
vBb = [24, 25]
vBc = [26, 27]
vOut = 28
vSc, vSh = 32, 40
vRaw = 48
ACC = 64
FR = 128


def acc(j, n):
    b = ACC + (j * 2 + n) * 4
    return f"v[{b}:{b+3}]"


def xf(st, f):
    b = FR + st * 64 + (f + 1) * 4
    return b


def wf(st, t, n):
    b = FR + st * 64 + 40 + (t * 2 + n) * 4
    return b


def r4(b):
    return f"v[{b}:{b+3}]"


class Gen:
    def __init__(self, o):
        self.o = o
        self.L = []
        self.nst = 0

    def A(self, s):
        self.L.append(s)

    def stamp(self):
        if self.o.stamps:
            i = self.nst
            self.nst += 1
            self.A(f"s_memrealtime s[{sTS+4*i}:{sTS+4*i+1}]")
            self.A(f"s_memtime s[{sTS+4*i+2}:{sTS+4*i+3}]")

    def dmaA(self, e):
        v = vA[(e >> 2) * 2 + (e & 1)]
        return f"buffer_load_dwordx4 v{v}, s[{sX}:{sX+3}], s{sSA} offen offset:{(e & 3) * 1024} lds{self.o.xflag}"

    def dmaB(self, t):
        return f"buffer_load_dwordx4 v{vB[t]}, s[{sW}:{sW+3}], s{sSB} offen offset:{t * 1024} lds{self.o.wflag}"

    def reads(self, st):
        def rx(f):
            b = xf(st, f)
            if f == -1:
                return f"ds_read_b128 {r4(b)}, v{vAm}"
            if f == 8:
                return f"ds_read_b128 {r4(b)}, v{vAp}"
            return f"ds_read_b128 {r4(b)}, v{vA0} offset:{f*2048}"
        def rw(t, n):
            b = wf(st, t, n)
            return [f"ds_read_b64_tr_b16 v[{b+2*u}:{b+2*u+1}], v{vBc[n]} offset:{t*1024+u*512}" for u in range(2)]
        R = []
        R += rw(0, 0) + [rx(-1)] + rw(1, 0) + [rx(0)] + rw(2, 0) + [rx(1)]
        R += rw(2, 1) + rw(1, 1) + rw(0, 1)
        R += [rx(f) for f in range(2, 9)]
        return R

    def mfmas(self, st):
        M = []
        for j in range(8):
            for n in range(2):
                for tt in range(3):
                    t = tt if n == 0 else 2 - tt
                    M.append(f"v_mfma_f32_16x16x32_bf16 {acc(j,n)}, {r4(wf(st,t,n))}, {r4(xf(st,j+t-1))}, {acc(j,n)}")
        return M

    def ringB(self):
        return [f"s_mov_b32 s{sB2}, s{sB1}", f"s_mov_b32 s{sB1}, s{sB0}",
                f"s_add_u32 s{sB0}, s{sB0}, {BSLOT}", f"s_cmp_eq_u32 s{sB0}, {BBASE+5*BSLOT}",
                f"s_cselect_b32 s{sB0}, {BBASE}, s{sB0}"]

    def ringA(self):
        return [f"s_mov_b32 s{sAo}, s{sAr}", f"s_add_u32 s{sAr}, s{sAr}, {ASLOT}",
                f"s_cmp_eq_u32 s{sAr}, {3*ASLOT}", f"s_cselect_b32 s{sAr}, 0, s{sAr}"]

    def setB(self):
        return [f"v_add_u32 v{vBc[n]}, s{sB0}, v{vBb[n]}" for n in range(2)]

    def setA(self):
        return [f"v_or_b32 v{vA0}, s{sAr}, v{vA0b}",
                f"v_and_or_b32 v{vAm}, s{sComb}, v{vAmm}, v{vAmb}",
                f"v_and_or_b32 v{vAp}, s{sComb}, v{vApm}, v{vApb}"]

    def flipA(self):
        return [f"v_xor_b32 v{r}, 64, v{r}" for r in (vA0, vAm, vAp)]

    def interleave(self, M, slots):
        for i, m in enumerate(M):
            self.A(m)
            for s in slots.get(i, []):
                self.A(s)

    def dma_setup(self):
        A = self.A
        A(f"v_lshrrev_b32 v{vT0}, 3, v{vL}")
        A(f"v_and_b32 v{vT1}, 6, v{vT0}")
        A(f"v_and_b32 v{vT2}, 7, v{vL}")
        A(f"v_xor_b32 v{vT1}, v{vT1}, v{vT2}")
        A(f"v_lshlrev_b32 v{vT1}, 4, v{vT1}")
        A(f"v_lshl_add_u32 v{vT1}, v{vT0}, 14, v{vT1}")
        A(f"s_lshr_b32 s{sT0}, s{sWave}, 1")
        A(f"s_lshl_b32 s{sT0}, s{sT0}, 7")
        A(f"s_and_b32 s{sT1}, s{sWave}, 1")
        A(f"s_lshl_b32 s{sT2}, s{sT1}, 2")
        A(f"s_add_u32 s{sT0}, s{sT0}, s{sT2}")
        A(f"s_add_u32 s{sT0}, s{sT0}, s{sM0}")
        A(f"s_lshl_b32 s{sT0}, s{sT0}, 11")
        A(f"v_add_u32 v{vA[0]}, s{sT0}, v{vT1}")
        A(f"v_add_u32 v{vA[1]}, {131072-1024}, v{vA[0]}")
        A(f"v_add_u32 v{vA[2]}, 4096, v{vA[0]}")
        A(f"v_add_u32 v{vA[3]}, 4096, v{vA[1]}")
        A(f"v_bfe_u32 v{vT1}, v{vL}, 4, 1")
        A(f"s_lshl_b32 s{sT1}, s{sT1}, 1")
        A(f"v_or_b32 v{vT1}, s{sT1}, v{vT1}")
        A(f"v_lshlrev_b32 v{vT1}, 1, v{vT1}")
        A(f"v_xor_b32 v{vT1}, v{vT1}, v{vT2}")
        A(f"v_lshlrev_b32 v{vT1}, 4, v{vT1}")
        A(f"v_lshl_add_u32 v{vT1}, v{vT0}, 11, v{vT1}")
        A(f"s_lshl_b32 s{sT0}, s{sWave}, 14")
        A(f"s_lshl_b32 s{sT2}, s{sN0}, 1")
        A(f"s_add_u32 s{sT0}, s{sT0}, s{sT2}")
        A(f"v_add_u32 v{vB[0]}, s{sT0}, v{vT1}")
        A(f"v_add_u32 v{vB[1]}, {2097152-1024}, v{vB[0]}")
        A(f"v_add_u32 v{vB[2]}, {2097152-1024}, v{vB[1]}")
        A(f"s_add_u32 s{sT0}, s{sM0}, 256")
        A(f"s_and_b32 s{sT1}, s{sT0}, 2047")
        A(f"s_lshl_b32 s{sT0}, s{sT0}, 11")
        A(f"s_cmp_eq_u32 s{sT1}, 0")
        A(f"s_cselect_b32 s{sT0}, 0x40000000, s{sT0}")
        A(f"s_sub_u32 s{sT2}, s{sM0}, 1")
        A(f"s_lshl_b32 s{sT2}, s{sT2}, 11")
        A(f"s_and_b32 s{sT1}, s{sM0}, 2047")
        A(f"s_cmp_eq_u32 s{sT1}, 0")
        A(f"s_cselect_b32 s{sT2}, 0x40000000, s{sT2}")
        A(f"v_and_b32 v{vT1}, 1, v{vT0}")
        A(f"v_cmp_eq_u32 vcc, 1, v{vT1}")
        A(f"v_mov_b32 v{vT3}, s{sT0}")
        A(f"v_mov_b32 v{vT4}, s{sT2}")
        A(f"v_mul_u32_u24 v{vT1}, 6, v{vT1}")
        A(f"v_cndmask_b32 v{vT3}, v{vT3}, v{vT4}, vcc")
        A(f"v_xor_b32 v{vT1}, v{vT1}, v{vT2}")
        A(f"v_lshl_add_u32 v{vT3}, v{vT1}, 4, v{vT3}")
        A(f"v_lshrrev_b32 v{vT1}, 4, v{vL}")
        A(f"v_lshl_add_u32 v{vT3}, v{vT1}, 7, v{vT3}")
        A(f"s_lshl_b32 s{sT0}, s{sWave}, 9")
        A(f"v_add_u32 v{vH}, s{sT0}, v{vT3}")
        A(f"s_lshl_b32 s{sWA}, s{sWave}, 13")
        A(f"s_mul_i32 s{sWB}, s{sWave}, 3072")

    def read_setup(self):
        A = self.A
        A(f"v_lshrrev_b32 v{vT0}, 4, v{vL}")
        A(f"v_and_b32 v{vT1}, 15, v{vL}")
        A(f"s_lshr_b32 s{sT0}, s{sWave}, 1")
        A(f"s_lshl_b32 s{sT0}, s{sT0}, 4")
        for (dst, msk, d, plane, hoff) in ((vA0b, None, 0, 0, 0), (vAmb, vAmm, -1, 7, 128), (vApb, vApm, 1, 0, 0)):
            A(f"s_add_u32 s{sT1}, s{sT0}, {d}")
            A(f"v_add_u32 v{vT2}, s{sT1}, v{vT1}")
            A(f"v_and_b32 v{vT3}, 6, v{vT2}")
            A(f"v_xor_b32 v{vT3}, v{vT3}, v{vT0}")
            A(f"v_lshlrev_b32 v{vT3}, 4, v{vT3}")
            A(f"v_and_b32 v{vT4}, 15, v{vT2}")
            A(f"v_lshlrev_b32 v{vT4}, 7, v{vT4}")
            A(f"v_bfe_u32 v{vT5}, v{vT2}, 4, 1")
            A(f"v_lshl_add_u32 v{vT4}, v{vT5}, 14, v{vT4}")
            if plane:
                A(f"v_add_u32 v{vT4}, {plane*2048}, v{vT4}")
            if msk is not None:
                A(f"v_cmp_gt_u32 vcc, 32, v{vT2}")
                A(f"v_mov_b32 v{vT5}, {HALO+hoff}")
                A(f"v_mov_b32 v{msk}, 0xf00")
                A(f"v_mov_b32 v{vT2}, 0x18000")
                A(f"v_cndmask_b32 v{vT4}, v{vT5}, v{vT4}, vcc")
                A(f"v_cndmask_b32 v{msk}, v{msk}, v{vT2}, vcc")
            A(f"v_or_b32 v{dst}, v{vT4}, v{vT3}")
        A(f"v_and_b32 v{vT2}, 1, v{vT0}")
        A(f"v_lshlrev_b32 v{vT2}, 1, v{vT2}")
        A(f"v_bfe_u32 v{vT3}, v{vT1}, 3, 1")
        A(f"v_or_b32 v{vT2}, v{vT2}, v{vT3}")
        A(f"s_and_b32 s{sT1}, s{sWave}, 1")
        A(f"s_lshl_b32 s{sT2}, s{sT1}, 1")
        A(f"v_xor_b32 v{vT2}, s{sT2}, v{vT2}")
        A(f"v_lshlrev_b32 v{vT2}, 5, v{vT2}")
        A(f"v_and_b32 v{vT3}, 3, v{vT1}")
        A(f"v_lshl_add_u32 v{vT2}, v{vT3}, 3, v{vT2}")
        A(f"v_lshrrev_b32 v{vT3}, 2, v{vT1}")
        A(f"v_lshl_add_u32 v{vT2}, v{vT3}, 7, v{vT2}")
        A(f"v_mul_u32_u24 v{vT3}, 3072, v{vT0}")
        A(f"v_add_u32 v{vBb[0]}, v{vT2}, v{vT3}")
        A(f"v_xor_b32 v{vBb[1]}, 32, v{vBb[0]}")
        A(f"s_lshl_b32 s{sT0}, s{sT0}, 3")
        A(f"s_add_u32 s{sT0}, s{sT0}, s{sM0}")
        A(f"s_lshl_b32 s{sT0}, s{sT0}, 11")
        A(f"s_lshl_b32 s{sT1}, s{sT1}, 5")
        A(f"s_add_u32 s{sT1}, s{sT1}, s{sN0}")
        A(f"s_lshl_b32 s{sT1}, s{sT1}, 1")
        A(f"s_add_u32 s{sT0}, s{sT0}, s{sT1}")
        A(f"v_and_b32 v{vT2}, 1, v{vT0}")
        A(f"v_lshlrev_b32 v{vT2}, 5, v{vT2}")
        A(f"v_lshrrev_b32 v{vT3}, 1, v{vT0}")
        A(f"v_lshl_add_u32 v{vT2}, v{vT3}, 4, v{vT2}")
        A(f"v_lshl_add_u32 v{vT2}, v{vT1}, 14, v{vT2}")
        A(f"v_add_u32 v{vOut}, s{sT0}, v{vT2}")
        A(f"v_lshlrev_b32 v{vT5}, 3, v{vT0}")
        A(f"v_add_u32 v{vT5}, s{sT1}, v{vT5}")

    def param_loads(self):
        A = self.A
        for p in range(4):
            A(f"s_mov_b32 s{sP}, s{sK+4+2*p}")
            A(f"s_mov_b32 s{sP+1}, s{sK+5+2*p}")
            for n in range(2):
                b = vRaw + p * 4 + n * 2
                A(f"buffer_load_dwordx2 v[{b}:{b+1}], v{vT5}, s[{sP}:{sP+3}], 0 offen offset:{n*32}")

    def param_math(self):
        A = self.A
        def unpack(dst, p, i):
            src = vRaw + p * 4 + (i >> 1)
            if i & 1:
                A(f"v_and_b32 v{dst}, 0xffff0000, v{src}")
            else:
                A(f"v_lshlrev_b32 v{dst}, 16, v{src}")
        def rnd():
            for i in range(8):
                A(f"v_cvt_pk_bf16_f32 v{vSc+i}, v{vSc+i}, v{vSc+i}")
            for i in range(8):
                A(f"v_lshlrev_b32 v{vSc+i}, 16, v{vSc+i}")
        for i in range(8):
            unpack(vSc + i, 1, i)
        for i in range(8):
            A(f"v_add_f32 v{vSc+i}, 0x3727c5ac, v{vSc+i}")
        rnd()
        for i in range(8):
            A(f"v_sqrt_f32 v{vSc+i}, v{vSc+i}")
        A("s_nop 0")
        rnd()
        for i in range(8):
            A(f"v_rcp_f32 v{vSc+i}, v{vSc+i}")
        A("s_nop 0")
        rnd()
        for i in range(8):
            unpack(vSh + i, 2, i)
        for i in range(8):
            A(f"v_mul_f32 v{vSc+i}, v{vSh+i}, v{vSc+i}")
        rnd()
        for i in range(8):
            unpack(vSh + i, 3, i)
            unpack(vT0, 0, i)
            A(f"v_fma_f32 v{vSh+i}, -v{vT0}, v{vSc+i}, v{vSh+i}")

    def epilogue(self):
        A = self.A
        A("s_nop 7")
        A(f"s_mov_b32 s{sT0}, 0xbfb8aa3b")
        A(f"s_mov_b32 s{sT1}, 0")
        T = FR
        for j in range(8):
            tb = T + (j & 1) * 16
            ab = ACC + j * 8
            for i in range(8):
                A(f"v_fma_f32 v{ab+i}, v{ab+i}, v{vSc+i}, v{vSh+i}")
            for i in range(8):
                A(f"v_mul_f32 v{tb+i}, s{sT0}, v{ab+i}")
            for i in range(8):
                A(f"v_exp_f32 v{tb+i}, v{tb+i}")
            for i in range(8):
                A(f"v_add_f32 v{tb+i}, 1.0, v{tb+i}")
            for i in range(8):
                A(f"v_rcp_f32 v{tb+i}, v{tb+i}")
            for i in range(8):
                A(f"v_mul_f32 v{ab+i}, v{ab+i}, v{tb+i}")
            ob = T + 32 + j * 4
            for i in range(4):
                A(f"v_cvt_pk_bf16_f32 v{ob+i}, v{ab+2*i}, v{ab+2*i+1}")
            A("s_nop 1")
            A(f"v_permlane16_swap_b32 v{ob}, v{ob+2}")
            A(f"v_permlane16_swap_b32 v{ob+1}, v{ob+3}")
            A(f"buffer_store_dwordx4 v[{ob}:{ob+3}], v{vOut}, s[{sO}:{sO+3}], s{sT1} offen offset:{(j&1)*2048}{self.o.oflag}")
            if j & 1:
                A(f"s_add_u32 s{sT1}, s{sT1}, 4096")

    def write_stamps(self):
        if not self.o.stamps:
            return
        A = self.A
        A("s_waitcnt vmcnt(0)")
        self.stamp()
        A("s_waitcnt lgkmcnt(0)")
        if self.o.diag >= 0:
            m = sTS + 4 * self.o.diag
            A(f"s_sub_u32 s{sT0}, s{m}, s{sTS}")
            A(f"s_add_u32 s{sT0}, s{sT0}, 4000")
            A("L_diag:")
            A(f"s_memrealtime s[{sT1}:{sT1+1}]")
            A("s_waitcnt lgkmcnt(0)")
            A(f"s_sub_u32 s{sT1}, s{sT1}, s{sTS}")
            A(f"s_cmp_lt_u32 s{sT1}, s{sT0}")
            A("s_cbranch_scc1 L_diag")
            return
        A(f"v_lshrrev_b32 v{vT0}, 6, v0")
        A(f"s_lshl_b32 s{sT0}, s2, 3")
        A(f"v_add_u32 v{vT0}, s{sT0}, v{vT0}")
        A(f"v_lshlrev_b32 v{vT0}, 6, v{vT0}")
        for i in range(8):
            A(f"v_mov_b32 v{vT1}, s{sTS+4*i}")
            A(f"v_mov_b32 v{vT2}, s{sTS+4*i+2}")
            A(f"buffer_store_dword v{vT1}, v{vT0}, s[{sWS}:{sWS+3}], 0 offen offset:{i*8}")
            A(f"buffer_store_dword v{vT2}, v{vT0}, s[{sWS}:{sWS+3}], 0 offen offset:{i*8+4}")

    def issueA(self, slot_s, win):
        return [f"s_add_u32 m0, s{slot_s}, s{sWA}" if win == 0 else f"s_add_u32 m0, m0, 4096"]

    def advSA(self):
        return [f"s_add_u32 s{sSA}, s{sSA}, 128", f"s_and_b32 s{sSA}, s{sSA}, 2047"]

    def advSB(self):
        return [f"s_add_u32 s{sSB}, s{sSB}, 65536", f"s_and_b32 s{sSB}, s{sSB}, 0x1fffff"]

    def prologue_dma(self, upto):
        A = self.A
        def a(slot, wins=(0, 1), adv=True):
            for win in wins:
                A(f"s_add_u32 m0, s{sWA}, {slot*ASLOT+win*4096}")
                A("s_nop 0")
                for e in range(4):
                    A(self.dmaA(win * 4 + e))
            if adv:
                for s in self.advSA(): A(s)
        def b(slot):
            A(f"s_add_u32 m0, s{sWB}, {BBASE+slot*BSLOT}")
            A("s_nop 0")
            for t in range(3):
                A(self.dmaB(t))
            for s in self.advSB(): A(s)
        b(0)
        a(0)
        A(f"s_lshl_b32 s{sT0}, s{sWave}, 10")
        A(f"s_add_u32 m0, s{sT0}, {HALO}")
        A("s_nop 0")
        A(f"buffer_load_dwordx4 v{vH}, s[{sX}:{sX+3}], 0 offen lds")
        b(1)
        b(2)
        a(1)
        b(3)
        if upto == "part":
            a(2, wins=(0,), adv=False)
            return 18
        a(2)
        b(4)
        return 25

    def build(self):
        o = self.o
        A = self.A
        d2 = o.mode == "d2"
        nthreads = 512 if d2 else 256
        A(HEADER.rstrip())
        A(f"; @launch grid=(256,1,1) block=({nthreads},1,1) lds={LDS_TOTAL}")
        A('.amdgcn_target "amdgcn-amd-amdhsa--gfx950"')
        A(f".text\n.globl {KN}\n.p2align 8\n.type {KN},@function\n{KN}:")
        A("s_cmp_ge_u32 s2, 256")
        A("s_cbranch_scc1 L_end")
        self.stamp()
        A(f"s_load_dwordx16 s[{sK}:{sK+15}], s[0:1], 0")
        if o.stamps:
            A(f"s_load_dwordx2 s[{sWS}:{sWS+1}], s[0:1], 64")
            A(f"s_mov_b32 s{sWS+2}, 0x100000")
            A(f"s_mov_b32 s{sWS+3}, 0x20000")
        A(f"v_lshrrev_b32 v{vT0}, 6, v0")
        A(f"v_and_b32 v{vL}, 63, v0")
        A(f"v_readfirstlane_b32 s{sT3}, v{vT0}")
        A(f"s_and_b32 s{sT0}, s2, 7")
        A(f"s_lshr_b32 s{sT1}, s2, 3")
        A(f"s_lshr_b32 s{sM0}, s{sT0}, 1")
        A(f"s_lshl_b32 s{sM0}, s{sM0}, 2")
        A(f"s_lshr_b32 s{sT2}, s{sT1}, 3")
        A(f"s_add_u32 s{sM0}, s{sM0}, s{sT2}")
        A(f"s_lshl_b32 s{sM0}, s{sM0}, 8")
        A(f"s_and_b32 s{sN0}, s{sT0}, 1")
        A(f"s_lshl_b32 s{sN0}, s{sN0}, 3")
        A(f"s_and_b32 s{sT2}, s{sT1}, 7")
        A(f"s_add_u32 s{sN0}, s{sN0}, s{sT2}")
        A(f"s_lshl_b32 s{sN0}, s{sN0}, 6")
        A(f"s_and_b32 s{sWave}, s{sT3}, 3")
        if o.stagger == "none":
            A(f"s_mov_b32 s{sHc}, 0")
        elif o.stagger == "xcd":
            A(f"s_lshl_b32 s{sHc}, s{sT0}, 1")
        elif o.stagger == "m":
            A(f"s_lshr_b32 s{sHc}, s{sM0}, 8")
        elif o.stagger == "m4":
            A(f"s_lshr_b32 s{sHc}, s{sM0}, 6")
            A(f"s_and_b32 s{sHc}, s{sHc}, 15")
        A(f"s_lshl_b32 s{sSA}, s{sHc}, 7")
        A(f"s_lshl_b32 s{sSB}, s{sHc}, 17")
        A(f"s_lshl_b32 s{sHc}, s{sHc}, 8")
        A(f"s_mov_b32 s{sX+2}, {XBYTES}")
        A(f"s_mov_b32 s{sX+3}, 0x20000")
        A(f"s_mov_b32 s{sW+2}, {WBYTES}")
        A(f"s_mov_b32 s{sW+3}, 0x20000")
        A(f"s_mov_b32 s{sO+2}, {XBYTES}")
        A(f"s_mov_b32 s{sO+3}, 0x20000")
        A(f"s_mov_b32 s{sP+2}, 2048")
        A(f"s_mov_b32 s{sP+3}, 0x20000")
        if d2:
            A(f"s_cmp_ge_u32 s{sT3}, 4")
            A("s_cbranch_scc1 L_loader")
        else:
            self.dma_setup()
        def srds():
            A("s_waitcnt lgkmcnt(0)")
            A(f"s_mov_b32 s{sX}, s{sK}")
            A(f"s_mov_b32 s{sX+1}, s{sK+1}")
            A(f"s_mov_b32 s{sW}, s{sK+2}")
            A(f"s_mov_b32 s{sW+1}, s{sK+3}")
            A(f"s_mov_b32 s{sO}, s{sK+12}")
            A(f"s_mov_b32 s{sO+1}, s{sK+13}")
        if not d2:
            srds()
            self.stamp()
            later = self.prologue_dma("part")
            self.read_setup()
            self.param_loads()
            later += 8
        else:
            self.read_setup()
            srds()
            self.stamp()
            self.param_loads()
        self.stamp()
        for i in range(64):
            A(f"v_mov_b32 v{ACC+i}, 0")
        A(f"s_mov_b32 s{sAr}, 0")
        A(f"s_mov_b32 s{sAo}, {2*ASLOT}")
        A(f"s_mov_b32 s{sB0}, {BBASE}")
        A(f"s_mov_b32 s{sB1}, {BBASE+4*BSLOT}")
        A(f"s_mov_b32 s{sB2}, {BBASE+3*BSLOT}")
        A(f"s_or_b32 s{sComb}, s{sAr}, s{sHc}")
        A(f"s_mov_b32 s{sC}, 0")
        for s in self.setA() + self.setB(): A(s)
        if d2:
            A("s_waitcnt vmcnt(0)")
            self.param_math()
        else:
            A(f"s_waitcnt vmcnt({later})")
        A("s_barrier")
        self.stamp()
        for s in self.reads(0): A(s)
        for s in self.ringB() + self.flipA() + self.setB(): A(s)
        A(".p2align 6")
        A("L_loop:")
        A("s_waitcnt lgkmcnt(0)")
        sl = {}
        def put(i, x):
            sl.setdefault(i, []).extend(x if isinstance(x, list) else [x])
        R = self.reads(1)
        for k, r in enumerate(R):
            put(int(k * o.rspan / len(R)), r)
        if not d2:
            put(1, f"s_add_u32 m0, s{sAo}, s{sWA}")
            put(2, "s_add_u32 m0, m0, 4096")
            for e in range(4):
                put(4 + e * 6, self.dmaA(4 + e))
            put(24, self.advSA()[0]); put(25, self.advSA()[1])
            put(23, f"s_add_u32 m0, s{sB2}, s{sWB}")
            put(26, [f"s_cmp_lt_u32 s{sC}, 14", f"s_cselect_b32 s{sW+2}, {WBYTES}, 0"])
            for t in range(3):
                put(28 + t * 6, self.dmaB(t))
            put(41, self.advSB()[0]); put(42, self.advSB()[1])
        tail = self.ringA() + [f"s_add_u32 s{sHc}, s{sHc}, 256", f"s_and_b32 s{sHc}, s{sHc}, 0xf00",
                               f"s_or_b32 s{sComb}, s{sAr}, s{sHc}"]
        rb = self.ringB()
        put(30, tail[0:2]); put(31, tail[2:4]); put(32, tail[4]); put(33, tail[5]); put(35, tail[6])
        put(37, rb[0:2]); put(38, rb[2]); put(39, rb[3:5])
        va = self.setA() + self.setB()
        for k, s in enumerate(va):
            put(42 + k, s)
        put(47, "s_waitcnt lgkmcnt(0)" if d2 else "s_waitcnt vmcnt(11) lgkmcnt(0)")
        put(47, "s_barrier")
        self.interleave(self.mfmas(0), sl)
        sl = {}
        R = self.reads(0)
        for k, r in enumerate(R):
            put(int(k * o.rspan / len(R)), r)
        if not d2:
            put(1, f"s_add_u32 m0, s{sB2}, s{sWB}")
            for t in range(3):
                put(4 + t * 6, self.dmaB(t))
            put(17, self.advSB()[0]); put(18, self.advSB()[1])
            put(19, f"s_add_u32 m0, s{sAo}, s{sWA}")
            put(20, [f"s_cmp_lt_u32 s{sC}, 13", f"s_cselect_b32 s{sX+2}, {XBYTES}, 0"])
            for e in range(4):
                put(22 + e * 6, self.dmaA(e))
        put(37, rb[0:2]); put(38, rb[2]); put(39, rb[3:5])
        va = self.flipA() + self.setB()
        for k, s in enumerate(va):
            put(41 + k, s)
        put(46, f"s_add_u32 s{sC}, s{sC}, 1")
        put(46, f"s_cmp_lt_u32 s{sC}, 16")
        put(47, "s_cbranch_scc1 L_loop")
        self.interleave(self.mfmas(1), sl)
        self.stamp()
        A("s_waitcnt lgkmcnt(0)")
        if not d2:
            self.param_math()
        self.epilogue()
        self.stamp()
        self.write_stamps()
        A("L_end:")
        A("s_endpgm")
        if d2:
            A("L_loader:")
            self.dma_setup()
            srds()
            later = self.prologue_dma("all")
            A(f"s_mov_b32 s{sAr}, 0")
            A(f"s_mov_b32 s{sB0}, {BBASE}")
            A(f"s_mov_b32 s{sC}, 0")
            A(f"s_waitcnt vmcnt({later})")
            A("s_barrier")
            A("L_lloop:")
            A("s_waitcnt vmcnt(11)")
            A("s_barrier")
            def nextB():
                for s in self.advSB() + self.ringB()[2:]: A(s)
            A(f"s_add_u32 m0, s{sB0}, s{sWB}")
            A("s_nop 0")
            for t in range(3): A(self.dmaB(t))
            nextB()
            A(f"s_cmp_eq_u32 s{sC}, 13")
            A("s_cbranch_scc1 L_ltail")
            for win in range(2):
                A(self.issueA(sAr, win)[0])
                A("s_nop 0")
                for e in range(4): A(self.dmaA(win * 4 + e))
            for s in self.advSA() + self.ringA()[1:]: A(s)
            A(f"s_add_u32 m0, s{sB0}, s{sWB}")
            A("s_nop 0")
            for t in range(3): A(self.dmaB(t))
            nextB()
            A(f"s_add_u32 s{sC}, s{sC}, 1")
            A("s_branch L_lloop")
            A("L_ltail:")
            A("s_waitcnt vmcnt(0)")
            A("s_barrier")
            A("s_endpgm")
        A(f""".section .rodata,"a"
.p2align 6
.amdhsa_kernel {KN}
  .amdhsa_next_free_vgpr 256
  .amdhsa_next_free_sgpr 102
  .amdhsa_accum_offset 256
  .amdhsa_group_segment_fixed_size 0
  .amdhsa_kernarg_size 72
  .amdhsa_user_sgpr_count 2
  .amdhsa_user_sgpr_kernarg_segment_ptr 1
  .amdhsa_system_sgpr_workgroup_id_x 1
.end_amdhsa_kernel""")
        return "\n".join(self.L) + "\n"


def main():
    p = argparse.ArgumentParser()
    p.add_argument("out")
    p.add_argument("--mode", default="d1")
    p.add_argument("--stamps", type=int, default=0)
    p.add_argument("--diag", type=int, default=-1)
    p.add_argument("--stagger", default="none")
    p.add_argument("--rspan", type=int, default=36)
    p.add_argument("--xflag", default="")
    p.add_argument("--wflag", default="")
    p.add_argument("--oflag", default="")
    o = p.parse_args()
    for k in ("xflag", "wflag", "oflag"):
        v = getattr(o, k)
        setattr(o, k, " " + v.replace("+", " ") if v else "")
    open(o.out, "w").write(Gen(o).build())


if __name__ == "__main__":
    main()
```

```python
import sys, argparse

HEADER = open("standalone__batchnorm__prompt.s.ref").read().split("; Override launch")[0]
KN = "standalone__batchnorm__prompt_kernel"

ASLOT = 32768
HALO = 3 * ASLOT
BBASE = HALO + 4096
BSLOT = 12288
LDS_TOTAL = BBASE + 5 * BSLOT
assert LDS_TOTAL == 163840
XBYTES = 4096 * 2048
WBYTES = 3 * 1024 * 2048

sX, sW, sO, sP = 8, 12, 16, 20
sWave, sM0, sN0 = 24, 25, 26
sC = 27
sAr, sAo = 28, 29
sB0, sB1, sB2 = 30, 31, 32
sHc = 33
sComb = 34
sSA, sSB = 35, 36
sWA, sWB = 37, 38
sT0, sT1, sT2, sT3 = 39, 40, 41, 42
sK = 44
sWS = 60
sTS = 64

vL, vT0, vT1, vT2, vT3, vT4, vT5 = 1, 2, 3, 4, 5, 6, 7
vA = [8, 9, 10, 11]
vB = [12, 13, 14]
vH = 15
vA0b, vAmb, vApb, vAmm, vApm = 16, 17, 18, 19, 20
vA0, vAm, vAp = 21, 22, 23
vBb = [24, 25]
vBc = [26, 27]
vOut = 28
vSc, vSh = 32, 40
vRaw = 48
ACC = 64
FR = 128


def acc(j, n):
    b = ACC + (j * 2 + n) * 4
    return f"v[{b}:{b+3}]"


def xf(st, f):
    b = FR + st * 64 + (f + 1) * 4
    return b


def wf(st, t, n):
    b = FR + st * 64 + 40 + (t * 2 + n) * 4
    return b


def r4(b):
    return f"v[{b}:{b+3}]"


class Gen:
    def __init__(self, o):
        self.o = o
        self.L = []
        self.nst = 0

    def A(self, s):
        self.L.append(s)

    def stamp(self):
        if self.o.stamps:
            i = self.nst
            self.nst += 1
            self.A(f"s_memrealtime s[{sTS+4*i}:{sTS+4*i+1}]")
            self.A(f"s_memtime s[{sTS+4*i+2}:{sTS+4*i+3}]")

    def dmaA(self, e):
        v = vA[(e >> 2) * 2 + (e & 1)]
        return f"buffer_load_dwordx4 v{v}, s[{sX}:{sX+3}], s{sSA} offen offset:{(e & 3) * 1024}{self.o.xflag} lds"

    def dmaB(self, t):
        return f"buffer_load_dwordx4 v{vB[t]}, s[{sW}:{sW+3}], s{sSB} offen offset:{t * 1024}{self.o.wflag} lds"

    def reads(self, st):
        def rx(f):
            b = xf(st, f)
            if f == -1:
                return f"ds_read_b128 {r4(b)}, v{vAm}"
            if f == 8:
                return f"ds_read_b128 {r4(b)}, v{vAp}"
            return f"ds_read_b128 {r4(b)}, v{vA0} offset:{f*2048}"
        def rw(t, n):
            b = wf(st, t, n)
            return [f"ds_read_b64_tr_b16 v[{b+2*u}:{b+2*u+1}], v{vBc[n]} offset:{t*1024+u*512}" for u in range(2)]
        R = []
        R += rw(0, 0) + [rx(-1)] + rw(1, 0) + [rx(0)] + rw(2, 0) + [rx(1)]
        R += rw(2, 1) + rw(1, 1) + rw(0, 1)
        R += [rx(f) for f in range(2, 9)]
        return R

    def filt(self, R):
        if "nordx" in self.o.abl:
            R = [r for r in R if "b128" not in r]
        if "nordw" in self.o.abl:
            R = [r for r in R if "b128" in r]
        return R

    def mfmas(self, st):
        M = []
        for j in range(8):
            for n in range(2):
                for tt in range(3):
                    t = tt if n == 0 else 2 - tt
                    M.append(f"v_mfma_f32_16x16x32_bf16 {acc(j,n)}, {r4(wf(st,t,n))}, {r4(xf(st,j+t-1))}, {acc(j,n)}")
        return M

    def ringB(self):
        return [f"s_mov_b32 s{sB2}, s{sB1}", f"s_mov_b32 s{sB1}, s{sB0}",
                f"s_add_u32 s{sB0}, s{sB0}, {BSLOT}", f"s_cmp_eq_u32 s{sB0}, {BBASE+5*BSLOT}",
                f"s_cselect_b32 s{sB0}, {BBASE}, s{sB0}"]

    def ringA(self):
        return [f"s_mov_b32 s{sAo}, s{sAr}", f"s_add_u32 s{sAr}, s{sAr}, {ASLOT}",
                f"s_cmp_eq_u32 s{sAr}, {3*ASLOT}", f"s_cselect_b32 s{sAr}, 0, s{sAr}"]

    def setB(self):
        return [f"v_add_u32 v{vBc[n]}, s{sB0}, v{vBb[n]}" for n in range(2)]

    def setA(self):
        return [f"v_or_b32 v{vA0}, s{sAr}, v{vA0b}",
                f"v_and_or_b32 v{vAm}, s{sComb}, v{vAmm}, v{vAmb}",
                f"v_and_or_b32 v{vAp}, s{sComb}, v{vApm}, v{vApb}"]

    def flipA(self):
        return [f"v_xor_b32 v{r}, 64, v{r}" for r in (vA0, vAm, vAp)]

    def interleave(self, M, slots):
        for i, m in enumerate(M):
            self.A(m)
            for s in slots.get(i, []):
                self.A(s)

    def dma_setup(self):
        A = self.A
        A(f"v_lshrrev_b32 v{vT0}, 3, v{vL}")
        A(f"v_and_b32 v{vT1}, 6, v{vT0}")
        A(f"v_and_b32 v{vT2}, 7, v{vL}")
        A(f"v_xor_b32 v{vT1}, v{vT1}, v{vT2}")
        A(f"v_lshlrev_b32 v{vT1}, 4, v{vT1}")
        A(f"v_lshl_add_u32 v{vT1}, v{vT0}, 14, v{vT1}")
        A(f"s_lshr_b32 s{sT0}, s{sWave}, 1")
        A(f"s_lshl_b32 s{sT0}, s{sT0}, 7")
        A(f"s_and_b32 s{sT1}, s{sWave}, 1")
        A(f"s_lshl_b32 s{sT2}, s{sT1}, 2")
        A(f"s_add_u32 s{sT0}, s{sT0}, s{sT2}")
        A(f"s_add_u32 s{sT0}, s{sT0}, s{sM0}")
        A(f"s_lshl_b32 s{sT0}, s{sT0}, 11")
        A(f"v_add_u32 v{vA[0]}, s{sT0}, v{vT1}")
        A(f"v_add_u32 v{vA[1]}, {131072-1024}, v{vA[0]}")
        A(f"v_add_u32 v{vA[2]}, 4096, v{vA[0]}")
        A(f"v_add_u32 v{vA[3]}, 4096, v{vA[1]}")
        A(f"v_bfe_u32 v{vT1}, v{vL}, 4, 1")
        A(f"s_lshl_b32 s{sT1}, s{sT1}, 1")
        A(f"v_or_b32 v{vT1}, s{sT1}, v{vT1}")
        A(f"v_lshlrev_b32 v{vT1}, 1, v{vT1}")
        A(f"v_xor_b32 v{vT1}, v{vT1}, v{vT2}")
        A(f"v_lshlrev_b32 v{vT1}, 4, v{vT1}")
        A(f"v_lshl_add_u32 v{vT1}, v{vT0}, 11, v{vT1}")
        A(f"s_lshl_b32 s{sT0}, s{sWave}, 14")
        A(f"s_lshl_b32 s{sT2}, s{sN0}, 1")
        A(f"s_add_u32 s{sT0}, s{sT0}, s{sT2}")
        A(f"v_add_u32 v{vB[0]}, s{sT0}, v{vT1}")
        A(f"v_add_u32 v{vB[1]}, {2097152-1024}, v{vB[0]}")
        A(f"v_add_u32 v{vB[2]}, {2097152-1024}, v{vB[1]}")
        A(f"s_add_u32 s{sT0}, s{sM0}, 256")
        A(f"s_and_b32 s{sT1}, s{sT0}, 2047")
        A(f"s_lshl_b32 s{sT0}, s{sT0}, 11")
        A(f"s_cmp_eq_u32 s{sT1}, 0")
        A(f"s_cselect_b32 s{sT0}, 0x40000000, s{sT0}")
        A(f"s_sub_u32 s{sT2}, s{sM0}, 1")
        A(f"s_lshl_b32 s{sT2}, s{sT2}, 11")
        A(f"s_and_b32 s{sT1}, s{sM0}, 2047")
        A(f"s_cmp_eq_u32 s{sT1}, 0")
        A(f"s_cselect_b32 s{sT2}, 0x40000000, s{sT2}")
        A(f"v_and_b32 v{vT1}, 1, v{vT0}")
        A(f"v_cmp_eq_u32 vcc, 1, v{vT1}")
        A(f"v_mov_b32 v{vT3}, s{sT0}")
        A(f"v_mov_b32 v{vT4}, s{sT2}")
        A(f"v_mul_u32_u24 v{vT1}, 6, v{vT1}")
        A(f"v_cndmask_b32 v{vT3}, v{vT3}, v{vT4}, vcc")
        A(f"v_xor_b32 v{vT1}, v{vT1}, v{vT2}")
        A(f"v_lshl_add_u32 v{vT3}, v{vT1}, 4, v{vT3}")
        A(f"v_lshrrev_b32 v{vT1}, 4, v{vL}")
        A(f"v_lshl_add_u32 v{vT3}, v{vT1}, 7, v{vT3}")
        A(f"s_lshl_b32 s{sT0}, s{sWave}, 9")
        A(f"v_add_u32 v{vH}, s{sT0}, v{vT3}")
        A(f"s_lshl_b32 s{sWA}, s{sWave}, 13")
        A(f"s_mul_i32 s{sWB}, s{sWave}, 3072")

    def read_setup(self):
        A = self.A
        A(f"v_lshrrev_b32 v{vT0}, 4, v{vL}")
        A(f"v_and_b32 v{vT1}, 15, v{vL}")
        A(f"s_lshr_b32 s{sT0}, s{sWave}, 1")
        A(f"s_lshl_b32 s{sT0}, s{sT0}, 4")
        for (dst, msk, d, plane, hoff) in ((vA0b, None, 0, 0, 0), (vAmb, vAmm, -1, 7, 128), (vApb, vApm, 1, 0, 0)):
            A(f"s_add_u32 s{sT1}, s{sT0}, {d}")
            A(f"v_add_u32 v{vT2}, s{sT1}, v{vT1}")
            A(f"v_and_b32 v{vT3}, 6, v{vT2}")
            A(f"v_xor_b32 v{vT3}, v{vT3}, v{vT0}")
            A(f"v_lshlrev_b32 v{vT3}, 4, v{vT3}")
            A(f"v_and_b32 v{vT4}, 15, v{vT2}")
            A(f"v_lshlrev_b32 v{vT4}, 7, v{vT4}")
            A(f"v_bfe_u32 v{vT5}, v{vT2}, 4, 1")
            A(f"v_lshl_add_u32 v{vT4}, v{vT5}, 14, v{vT4}")
            if plane:
                A(f"v_add_u32 v{vT4}, {plane*2048}, v{vT4}")
            if msk is not None:
                A(f"v_cmp_gt_u32 vcc, 32, v{vT2}")
                A(f"v_mov_b32 v{vT5}, {HALO+hoff}")
                A(f"v_mov_b32 v{msk}, 0xf00")
                A(f"v_mov_b32 v{vT2}, 0x18000")
                A(f"v_cndmask_b32 v{vT4}, v{vT5}, v{vT4}, vcc")
                A(f"v_cndmask_b32 v{msk}, v{msk}, v{vT2}, vcc")
            A(f"v_or_b32 v{dst}, v{vT4}, v{vT3}")
        A(f"v_and_b32 v{vT2}, 1, v{vT0}")
        A(f"v_lshlrev_b32 v{vT2}, 1, v{vT2}")
        A(f"v_bfe_u32 v{vT3}, v{vT1}, 3, 1")
        A(f"v_or_b32 v{vT2}, v{vT2}, v{vT3}")
        A(f"s_and_b32 s{sT1}, s{sWave}, 1")
        A(f"s_lshl_b32 s{sT2}, s{sT1}, 1")
        A(f"v_xor_b32 v{vT2}, s{sT2}, v{vT2}")
        A(f"v_lshlrev_b32 v{vT2}, 5, v{vT2}")
        A(f"v_and_b32 v{vT3}, 3, v{vT1}")
        A(f"v_lshl_add_u32 v{vT2}, v{vT3}, 3, v{vT2}")
        A(f"v_lshrrev_b32 v{vT3}, 2, v{vT1}")
        A(f"v_lshl_add_u32 v{vT2}, v{vT3}, 7, v{vT2}")
        A(f"v_mul_u32_u24 v{vT3}, 3072, v{vT0}")
        A(f"v_add_u32 v{vBb[0]}, v{vT2}, v{vT3}")
        A(f"v_xor_b32 v{vBb[1]}, 32, v{vBb[0]}")
        A(f"s_lshl_b32 s{sT0}, s{sT0}, 3")
        A(f"s_add_u32 s{sT0}, s{sT0}, s{sM0}")
        A(f"s_lshl_b32 s{sT0}, s{sT0}, 11")
        A(f"s_lshl_b32 s{sT1}, s{sT1}, 5")
        A(f"s_add_u32 s{sT1}, s{sT1}, s{sN0}")
        A(f"s_lshl_b32 s{sT1}, s{sT1}, 1")
        A(f"s_add_u32 s{sT0}, s{sT0}, s{sT1}")
        A(f"v_and_b32 v{vT2}, 1, v{vT0}")
        A(f"v_lshlrev_b32 v{vT2}, 5, v{vT2}")
        A(f"v_lshrrev_b32 v{vT3}, 1, v{vT0}")
        A(f"v_lshl_add_u32 v{vT2}, v{vT3}, 4, v{vT2}")
        A(f"v_lshl_add_u32 v{vT2}, v{vT1}, 14, v{vT2}")
        A(f"v_add_u32 v{vOut}, s{sT0}, v{vT2}")
        A(f"v_lshlrev_b32 v{vT5}, 3, v{vT0}")
        A(f"v_add_u32 v{vT5}, s{sT1}, v{vT5}")

    def param_loads(self):
        A = self.A
        for p in range(4):
            A(f"s_mov_b32 s{sP}, s{sK+4+2*p}")
            A(f"s_mov_b32 s{sP+1}, s{sK+5+2*p}")
            for n in range(2):
                b = vRaw + p * 4 + n * 2
                A(f"buffer_load_dwordx2 v[{b}:{b+1}], v{vT5}, s[{sP}:{sP+3}], 0 offen offset:{n*32}")

    def param_math(self):
        A = self.A
        def unpack(dst, p, i):
            src = vRaw + p * 4 + (i >> 1)
            if i & 1:
                A(f"v_and_b32 v{dst}, 0xffff0000, v{src}")
            else:
                A(f"v_lshlrev_b32 v{dst}, 16, v{src}")
        def rnd():
            for i in range(8):
                A(f"v_cvt_pk_bf16_f32 v{vSc+i}, v{vSc+i}, v{vSc+i}")
            for i in range(8):
                A(f"v_lshlrev_b32 v{vSc+i}, 16, v{vSc+i}")
        for i in range(8):
            unpack(vSc + i, 1, i)
        for i in range(8):
            A(f"v_add_f32 v{vSc+i}, 0x3727c5ac, v{vSc+i}")
        rnd()
        for i in range(8):
            A(f"v_sqrt_f32 v{vSc+i}, v{vSc+i}")
        A("s_nop 0")
        rnd()
        for i in range(8):
            A(f"v_rcp_f32 v{vSc+i}, v{vSc+i}")
        A("s_nop 0")
        rnd()
        for i in range(8):
            unpack(vSh + i, 2, i)
        for i in range(8):
            A(f"v_mul_f32 v{vSc+i}, v{vSh+i}, v{vSc+i}")
        rnd()
        for i in range(8):
            unpack(vSh + i, 3, i)
            unpack(vT0, 0, i)
            A(f"v_fma_f32 v{vSh+i}, -v{vT0}, v{vSc+i}, v{vSh+i}")

    def epilogue(self):
        A = self.A
        A("s_nop 7")
        A(f"s_mov_b32 s{sT0}, 0xbfb8aa3b")
        A(f"s_mov_b32 s{sT1}, 0")
        T = FR
        for j in range(8):
            tb = T + (j & 1) * 16
            ab = ACC + j * 8
            for i in range(8):
                A(f"v_fma_f32 v{ab+i}, v{ab+i}, v{vSc+i}, v{vSh+i}")
            for i in range(8):
                A(f"v_mul_f32 v{tb+i}, s{sT0}, v{ab+i}")
            for i in range(8):
                A(f"v_exp_f32 v{tb+i}, v{tb+i}")
            for i in range(8):
                A(f"v_add_f32 v{tb+i}, 1.0, v{tb+i}")
            for i in range(8):
                A(f"v_rcp_f32 v{tb+i}, v{tb+i}")
            for i in range(8):
                A(f"v_mul_f32 v{ab+i}, v{ab+i}, v{tb+i}")
            ob = T + 32 + j * 4
            for i in range(4):
                A(f"v_cvt_pk_bf16_f32 v{ob+i}, v{ab+2*i}, v{ab+2*i+1}")
            A("s_nop 1")
            A(f"v_permlane16_swap_b32 v{ob}, v{ob+2}")
            A(f"v_permlane16_swap_b32 v{ob+1}, v{ob+3}")
            A(f"buffer_store_dwordx4 v[{ob}:{ob+3}], v{vOut}, s[{sO}:{sO+3}], s{sT1} offen offset:{(j&1)*2048}{self.o.oflag}")
            if j & 1:
                A(f"s_add_u32 s{sT1}, s{sT1}, 4096")

    def write_stamps(self):
        if not self.o.stamps:
            return
        A = self.A
        A("s_waitcnt vmcnt(0)")
        self.stamp()
        A("s_waitcnt lgkmcnt(0)")
        if self.o.diag >= 0:
            m = sTS + 4 * self.o.diag
            A(f"s_sub_u32 s{sT0}, s{m+self.o.dcyc*2}, s{sTS+4*self.o.dfrom+self.o.dcyc*2}")
            if self.o.dcyc:
                A(f"s_lshr_b32 s{sT0}, s{sT0}, {self.o.dsh}")
            else:
                A(f"s_lshl_b32 s{sT0}, s{sT0}, {self.o.dsh}")
            A(f"s_add_u32 s{sT0}, s{sT0}, 4000")
            A("L_diag:")
            A(f"s_memrealtime s[{sT1}:{sT1+1}]")
            A("s_waitcnt lgkmcnt(0)")
            A(f"s_sub_u32 s{sT1}, s{sT1}, s{sTS}")
            A(f"s_cmp_lt_u32 s{sT1}, s{sT0}")
            A("s_cbranch_scc1 L_diag")
            return
        A(f"v_lshrrev_b32 v{vT0}, 6, v0")
        A(f"s_lshl_b32 s{sT0}, s2, 3")
        A(f"v_add_u32 v{vT0}, s{sT0}, v{vT0}")
        A(f"v_lshlrev_b32 v{vT0}, 6, v{vT0}")
        if self.o.trace:
            A(f"s_lshl_b32 s{sT0}, s2, 11")
            A(f"s_add_u32 s{sT0}, s{sT0}, 0x40000")
            A(f"v_lshlrev_b32 v{vT1}, 2, v0")
            A(f"buffer_store_dword v30, v{vT1}, s[{sWS}:{sWS+3}], s{sT0} offen")
        for i in range(8):
            A(f"v_mov_b32 v{vT1}, s{sTS+4*i}")
            A(f"v_mov_b32 v{vT2}, s{sTS+4*i+2}")
            A(f"buffer_store_dword v{vT1}, v{vT0}, s[{sWS}:{sWS+3}], 0 offen offset:{i*8}")
            A(f"buffer_store_dword v{vT2}, v{vT0}, s[{sWS}:{sWS+3}], 0 offen offset:{i*8+4}")

    def issueA(self, slot_s, win):
        return [f"s_add_u32 m0, s{slot_s}, s{sWA}" if win == 0 else f"s_add_u32 m0, m0, 4096"]

    def advSA(self):
        return [f"s_add_u32 s{sSA}, s{sSA}, 128", f"s_and_b32 s{sSA}, s{sSA}, 2047"]

    def advSB(self):
        return [f"s_add_u32 s{sSB}, s{sSB}, 65536", f"s_and_b32 s{sSB}, s{sSB}, 0x1fffff"]

    def prologue_dma(self, upto):
        A = self.A
        def a(slot, wins=(0, 1), adv=True):
            for win in wins:
                A(f"s_add_u32 m0, s{sWA}, {slot*ASLOT+win*4096}")
                A("s_nop 0")
                for e in range(4):
                    A(self.dmaA(win * 4 + e))
            if adv:
                for s in self.advSA(): A(s)
        def b(slot):
            A(f"s_add_u32 m0, s{sWB}, {BBASE+slot*BSLOT}")
            A("s_nop 0")
            for t in range(3):
                A(self.dmaB(t))
            for s in self.advSB(): A(s)
        b(0)
        a(0)
        A(f"s_lshl_b32 s{sT0}, s{sWave}, 10")
        A(f"s_add_u32 m0, s{sT0}, {HALO}")
        A("s_nop 0")
        A(f"buffer_load_dwordx4 v{vH}, s[{sX}:{sX+3}], 0 offen lds")
        b(1)
        b(2)
        a(1)
        b(3)
        if upto == "part":
            a(2, wins=(0,), adv=False)
            return 18
        a(2)
        b(4)
        return 25

    def build(self):
        o = self.o
        A = self.A
        d2 = o.mode == "d2"
        nthreads = 512 if d2 else 256
        A(HEADER.rstrip())
        A(f"; @launch grid=(256,1,1) block=({nthreads},1,1) lds={LDS_TOTAL}")
        A('.amdgcn_target "amdgcn-amd-amdhsa--gfx950"')
        A(f".text\n.globl {KN}\n.p2align 8\n.type {KN},@function\n{KN}:")
        A("s_cmp_ge_u32 s2, 256")
        A("s_cbranch_scc1 L_end")
        self.stamp()
        A(f"s_load_dwordx16 s[{sK}:{sK+15}], s[0:1], 0")
        if o.stamps:
            A(f"s_load_dwordx2 s[{sWS}:{sWS+1}], s[0:1], 64")
            A(f"s_mov_b32 s{sWS+2}, 0x100000")
            A(f"s_mov_b32 s{sWS+3}, 0x20000")
        A(f"v_lshrrev_b32 v{vT0}, 6, v0")
        A(f"v_and_b32 v{vL}, 63, v0")
        A(f"v_readfirstlane_b32 s{sT3}, v{vT0}")
        A(f"s_and_b32 s{sT0}, s2, 7")
        A(f"s_lshr_b32 s{sT1}, s2, 3")
        A(f"s_lshr_b32 s{sM0}, s{sT0}, 1")
        A(f"s_lshl_b32 s{sM0}, s{sM0}, 2")
        A(f"s_lshr_b32 s{sT2}, s{sT1}, 3")
        A(f"s_add_u32 s{sM0}, s{sM0}, s{sT2}")
        A(f"s_lshl_b32 s{sM0}, s{sM0}, 8")
        A(f"s_and_b32 s{sN0}, s{sT0}, 1")
        A(f"s_lshl_b32 s{sN0}, s{sN0}, 3")
        A(f"s_and_b32 s{sT2}, s{sT1}, 7")
        A(f"s_add_u32 s{sN0}, s{sN0}, s{sT2}")
        A(f"s_lshl_b32 s{sN0}, s{sN0}, 6")
        A(f"s_and_b32 s{sWave}, s{sT3}, 3")
        if o.stagger == "none":
            A(f"s_mov_b32 s{sHc}, 0")
        elif o.stagger == "xcd":
            A(f"s_lshl_b32 s{sHc}, s{sT0}, 1")
        elif o.stagger == "m":
            A(f"s_lshr_b32 s{sHc}, s{sM0}, 8")
        elif o.stagger == "m4":
            A(f"s_lshr_b32 s{sHc}, s{sM0}, 6")
            A(f"s_and_b32 s{sHc}, s{sHc}, 15")
        A(f"s_lshl_b32 s{sSA}, s{sHc}, 7")
        A(f"s_lshl_b32 s{sSB}, s{sHc}, 17")
        A(f"s_lshl_b32 s{sHc}, s{sHc}, 8")
        A(f"s_mov_b32 s{sX+2}, {XBYTES}")
        A(f"s_mov_b32 s{sX+3}, 0x20000")
        A(f"s_mov_b32 s{sW+2}, {WBYTES}")
        A(f"s_mov_b32 s{sW+3}, 0x20000")
        A(f"s_mov_b32 s{sO+2}, {XBYTES}")
        A(f"s_mov_b32 s{sO+3}, 0x20000")
        A(f"s_mov_b32 s{sP+2}, 2048")
        A(f"s_mov_b32 s{sP+3}, 0x20000")
        if d2:
            A(f"s_cmp_ge_u32 s{sT3}, 4")
            A("s_cbranch_scc1 L_loader")
        else:
            self.dma_setup()
        def srds():
            A("s_waitcnt lgkmcnt(0)")
            A(f"s_mov_b32 s{sX}, s{sK}")
            A(f"s_mov_b32 s{sX+1}, s{sK+1}")
            A(f"s_mov_b32 s{sW}, s{sK+2}")
            A(f"s_mov_b32 s{sW+1}, s{sK+3}")
            A(f"s_mov_b32 s{sO}, s{sK+12}")
            A(f"s_mov_b32 s{sO+1}, s{sK+13}")
        if not d2:
            srds()
            self.stamp()
            later = self.prologue_dma("part")
            self.read_setup()
            self.param_loads()
            later += 8
        else:
            self.read_setup()
            srds()
            self.stamp()
            self.param_loads()
        self.stamp()
        for i in range(64):
            A(f"v_mov_b32 v{ACC+i}, 0")
        A(f"s_mov_b32 s{sAr}, 0")
        A(f"s_mov_b32 s{sAo}, {2*ASLOT}")
        A(f"s_mov_b32 s{sB0}, {BBASE}")
        A(f"s_mov_b32 s{sB1}, {BBASE+4*BSLOT}")
        A(f"s_mov_b32 s{sB2}, {BBASE+3*BSLOT}")
        A(f"s_or_b32 s{sComb}, s{sAr}, s{sHc}")
        A(f"s_mov_b32 s{sC}, 0")
        for s in self.setA() + self.setB(): A(s)
        if d2:
            A("s_waitcnt vmcnt(0)")
            self.param_math()
        else:
            A(f"s_waitcnt vmcnt({later})")
        A("s_barrier")
        self.stamp()
        for s in self.reads(0): A(s)
        for s in self.ringB() + self.flipA() + self.setB(): A(s)
        if o.abl:
            A("s_waitcnt lgkmcnt(0)")
            for s in self.reads(1): A(s)
        A(".p2align 6")
        A("L_loop:")
        A("s_waitcnt lgkmcnt(0)")
        sl = {}
        def put(i, x):
            sl.setdefault(i, []).extend(x if isinstance(x, list) else [x])
        R = self.filt(self.reads(1))
        for k, r in enumerate(R):
            put(int(k * o.rspan / len(R)), r)
        if not d2:
            put(1, f"s_add_u32 m0, s{sAo}, s{sWA}")
            put(2, "s_add_u32 m0, m0, 4096")
            for e in range(4):
                put(4 + e * 6, self.dmaA(4 + e))
            put(24, self.advSA()[0]); put(25, self.advSA()[1])
            put(23, f"s_add_u32 m0, s{sB2}, s{sWB}")
            put(26, [f"s_cmp_lt_u32 s{sC}, 14", f"s_cselect_b32 s{sW+2}, {WBYTES}, 0"])
            for t in range(3):
                put(28 + t * 6, self.dmaB(t))
            put(41, self.advSB()[0]); put(42, self.advSB()[1])
        tail = self.ringA() + [f"s_add_u32 s{sHc}, s{sHc}, 256", f"s_and_b32 s{sHc}, s{sHc}, 0xf00",
                               f"s_or_b32 s{sComb}, s{sAr}, s{sHc}"]
        rb = self.ringB()
        put(30, tail[0:2]); put(31, tail[2:4]); put(32, tail[4]); put(33, tail[5]); put(35, tail[6])
        put(37, rb[0:2]); put(38, rb[2]); put(39, rb[3:5])
        va = self.setA() + self.setB()
        for k, s in enumerate(va):
            put(42 + k, s)
        put(47, "s_waitcnt lgkmcnt(0)" if d2 else "s_waitcnt vmcnt(11) lgkmcnt(0)")
        put(47, "s_barrier")
        self.interleave(self.mfmas(0), sl)
        sl = {}
        R = self.filt(self.reads(0))
        for k, r in enumerate(R):
            put(int(k * o.rspan / len(R)), r)
        if not d2:
            put(1, f"s_add_u32 m0, s{sB2}, s{sWB}")
            for t in range(3):
                put(4 + t * 6, self.dmaB(t))
            put(17, self.advSB()[0]); put(18, self.advSB()[1])
            put(19, f"s_add_u32 m0, s{sAo}, s{sWA}")
            put(20, [f"s_cmp_lt_u32 s{sC}, 13", f"s_cselect_b32 s{sX+2}, {XBYTES}, 0"])
            for e in range(4):
                put(22 + e * 6, self.dmaA(e))
        if o.trace:
            put(0, f"s_memtime s[{sTS+28}:{sTS+29}]")
            put(44, f"s_mov_b32 m0, s{sC}")
            put(45, ["s_waitcnt lgkmcnt(0)", f"v_writelane_b32 v30, s{sTS+28}, m0"])
        put(37, rb[0:2]); put(38, rb[2]); put(39, rb[3:5])
        va = self.flipA() + self.setB()
        for k, s in enumerate(va):
            put(41 + k, s)
        put(46, f"s_add_u32 s{sC}, s{sC}, 1")
        put(46, f"s_cmp_lt_u32 s{sC}, 16")
        put(47, "s_cbranch_scc1 L_loop")
        self.interleave(self.mfmas(1), sl)
        self.stamp()
        A("s_waitcnt lgkmcnt(0)")
        if not d2:
            self.param_math()
        self.epilogue()
        self.stamp()
        self.write_stamps()
        A("L_end:")
        A("s_endpgm")
        if d2:
            A("L_loader:")
            self.dma_setup()
            srds()
            later = self.prologue_dma("all")
            A(f"s_mov_b32 s{sAr}, 0")
            A(f"s_mov_b32 s{sB0}, {BBASE}")
            A(f"s_mov_b32 s{sC}, 0")
            A(f"s_waitcnt vmcnt({later})")
            A("s_barrier")
            A("L_lloop:")
            A("s_waitcnt vmcnt(11)")
            A("s_barrier")
            def nextB():
                for s in self.advSB() + self.ringB()[2:]: A(s)
            A(f"s_add_u32 m0, s{sB0}, s{sWB}")
            A("s_nop 0")
            for t in range(3):
                if "nodmaw" not in o.abl: A(self.dmaB(t))
            nextB()
            A(f"s_cmp_eq_u32 s{sC}, 13")
            A("s_cbranch_scc1 L_ltail")
            for win in range(2):
                A(self.issueA(sAr, win)[0])
                A("s_nop 0")
                for e in range(4):
                    if "nodmax" not in o.abl: A(self.dmaA(win * 4 + e))
            for s in self.advSA() + self.ringA()[1:]: A(s)
            A(f"s_add_u32 m0, s{sB0}, s{sWB}")
            A("s_nop 0")
            for t in range(3):
                if "nodmaw" not in o.abl: A(self.dmaB(t))
            nextB()
            A(f"s_add_u32 s{sC}, s{sC}, 1")
            A("s_branch L_lloop")
            A("L_ltail:")
            A("s_waitcnt vmcnt(0)")
            A("s_barrier")
            A("s_endpgm")
        A(f""".section .rodata,"a"
.p2align 6
.amdhsa_kernel {KN}
  .amdhsa_next_free_vgpr 256
  .amdhsa_next_free_sgpr 102
  .amdhsa_accum_offset 256
  .amdhsa_group_segment_fixed_size 0
  .amdhsa_kernarg_size 72
  .amdhsa_user_sgpr_count 2
  .amdhsa_user_sgpr_kernarg_segment_ptr 1
  .amdhsa_system_sgpr_workgroup_id_x 1
.end_amdhsa_kernel""")
        return "\n".join(self.L) + "\n"


def main():
    p = argparse.ArgumentParser()
    p.add_argument("out")
    p.add_argument("--mode", default="d1")
    p.add_argument("--stamps", type=int, default=0)
    p.add_argument("--diag", type=int, default=-1)
    p.add_argument("--trace", type=int, default=0)
    p.add_argument("--abl", default="")
    p.add_argument("--dfrom", type=int, default=0)
    p.add_argument("--dsh", type=int, default=0)
    p.add_argument("--dcyc", type=int, default=0)
    p.add_argument("--stagger", default="none")
    p.add_argument("--rspan", type=int, default=36)
    p.add_argument("--xflag", default="")
    p.add_argument("--wflag", default="")
    p.add_argument("--oflag", default="")
    o = p.parse_args()
    for k in ("xflag", "wflag", "oflag"):
        v = getattr(o, k)
        setattr(o, k, " " + v.replace("+", " ") if v else "")
    open(o.out, "w").write(Gen(o).build())


if __name__ == "__main__":
    main()
```
